```python
import torch

def _softmax(x, axis=-1):
    return torch.softmax(x, dim=axis)
def _gelu(x):
    return torch.nn.functional.gelu(x, approximate="tanh")
def _silu(x):
    return torch.nn.functional.silu(x)
def _sigmoid(x):
    return torch.sigmoid(x)
def _layernorm(x, axis=-1, eps=1e-5):
    m = x.mean(dim=axis, keepdim=True)
    v = x.var(dim=axis, keepdim=True, unbiased=False)
    return (x - m) / torch.sqrt(v + eps)
def _scatter_add(tgt, idx, src, axis=0):
    return tgt.clone().index_add_(axis, idx, src)
def _segment_sum(src, seg, n):
    out = torch.zeros((n,) + src.shape[1:], dtype=src.dtype)
    return out.index_add_(0, seg, src)
def _pad(x, pw):
    flat = tuple(v for pair in reversed(pw) for v in pair)
    return torch.nn.functional.pad(x, flat)

kernel_name = 'gather_scatter__cheap_equivariant_egnn__graph'

def setup_inputs():

    _w = (lambda a: (lambda t: t.to(torch.bfloat16) if t.is_floating_point() else t)(torch.as_tensor(a)))
    N, deg, D, De = 10000, 64, 64, max(0, 1)
    E = N * deg
    return {
        "h": _w((lambda *s: torch.randn(*s, dtype=torch.bfloat16) * 0.1)(N, D)),
        "pos": _w((lambda *s: torch.randn(*s, dtype=torch.bfloat16) * 0.8)(N, 3)),
        "e_attr": _w((lambda *s: torch.randn(*s, dtype=torch.bfloat16) * 0.8)(E, De)),
        "src": _w((lambda lo, hi, *s: torch.randint(lo, hi, s))(0, N, E).to(torch.int64)),
        "dst": _w((lambda lo, hi, *s: torch.randint(lo, hi, s))(0, N, E).to(torch.int64)),
        "w_e": _w(0.1 * (lambda *s: torch.randn(*s, dtype=torch.bfloat16) * 0.8)(2 * D + 1 + De, D)),
        "w_x": _w(0.1 * (lambda *s: torch.randn(*s, dtype=torch.bfloat16) * 0.1)(D, 1)),
        "w_h": _w(0.1 * (lambda *s: torch.randn(*s, dtype=torch.bfloat16) * 0.1)(2 * D, D)),
    }

def reference(h, pos, e_attr, src, dst, w_e, w_x, w_h):
    N, D = h.shape[0], h.shape[1]
    diff = pos[dst] - pos[src]
    dist2 = torch.sum(diff * diff, axis=-1, keepdims=True)
    e_in = torch.concatenate([h[dst], h[src], dist2, e_attr], axis=-1)
    m_ij = _silu(e_in @ w_e)
    coord_scale = m_ij @ w_x
    pos_new = pos + _segment_sum(diff * coord_scale, dst, N)
    m_i = _segment_sum(m_ij, dst, N)
    h_new = h + _silu(torch.concatenate([h, m_i], axis=-1) @ w_h)
    return h_new, pos_new
```

```python
import re

TRANS = ('v_exp_f32','v_rcp_f32','v_log_f32','v_rsq_f32','v_sqrt_f32','v_sin_f32','v_cos_f32','v_exp_f16','v_rcp_f16')

def parse_regs(op):
    op = op.strip()
    op = re.sub(r'^-', '', op)
    m = re.match(r'^abs\((.*)\)$', op)
    if m: op = m.group(1)
    op = op.strip('|')
    m = re.match(r'^([vsa])\[(\d+):(\d+)\]$', op)
    if m:
        return [(m.group(1), i) for i in range(int(m.group(2)), int(m.group(3))+1)]
    m = re.match(r'^([vsa])(\d+)$', op)
    if m:
        return [(m.group(1), int(m.group(2)))]
    if op == 'vcc': return [('s','vcc_lo'),('s','vcc_hi')]
    if op in ('vcc_lo','vcc_hi'): return [('s',op)]
    if op == 'exec': return [('s','exec_lo'),('s','exec_hi')]
    if op in ('exec_lo','exec_hi'): return [('s',op)]
    if op == 'm0': return [('s','m0')]
    return []

class Ins:
    __slots__=('text','mn','ops','kind','dst','src','passes','states','srcC','srcAB','comment')
    def __init__(self, text):
        self.text = text
        body = text.split(';')[0].strip()
        parts = body.split(None,1)
        self.mn = parts[0]
        rest = parts[1] if len(parts)>1 else ''
        rest_nomod = re.split(r'\s+(?=(?:op_sel|op_sel_hi|neg_lo|neg_hi|offset|offset0|offset1|row_|quad_perm|bank_mask|bound_ctrl|dst_sel|dst_unused|src0_sel|src1_sel|clamp|mul:|div:|offen|idxen|lds|sc0|sc1|nt|bitop3|cbsz|abid|blgp|wave_|row))', rest)[0]
        self.ops = [o.strip() for o in rest_nomod.split(',')] if rest_nomod.strip() else []
        self.states = 1
        self.passes = 0
        self.srcC=[]; self.srcAB=[]
        mn = self.mn
        R = lambda i: parse_regs(self.ops[i]) if i < len(self.ops) else []
        self.dst=[]; self.src=[]
        if mn == 's_nop':
            self.kind='nop'; self.states = int(self.ops[0],0)+1
        elif mn.startswith('v_mfma'):
            self.kind='mfma'
            self.dst=R(0); self.srcAB=R(1)+R(2); self.srcC=R(3); self.src=self.srcAB+self.srcC
            self.passes = 8 if '32x32x16' in mn else 4 if '16x16x32' in mn else 16
        elif mn.startswith('v_'):
            self.kind='valu'
            if mn.startswith('v_cmp'):
                self.dst=R(0); self.src=R(1)+R(2)
                if mn.startswith('v_cmpx'): self.dst += [('s','exec_lo'),('s','exec_hi')]
            elif mn.startswith('v_readlane') or mn.startswith('v_readfirstlane'):
                self.dst=R(0); self.src=R(1)+R(2)
            elif mn.startswith('v_permlane') and 'swap' in mn:
                self.dst=R(0)+R(1); self.src=R(0)+R(1)
            elif mn.startswith(('v_add_co','v_sub_co','v_addc_co','v_subb_co')):
                self.dst=R(0)+R(1); self.src=sum([R(i) for i in range(2,len(self.ops))],[])
            else:
                self.dst=R(0); self.src=sum([R(i) for i in range(1,len(self.ops))],[])
                if mn.startswith(('v_fmac','v_dot2c','v_mac','v_pk_fmac')) or '_dpp' in mn or 'sdwa' in mn or mn.startswith('v_writelane'):
                    self.src += R(0)
                if mn.startswith('v_cndmask') and len(self.ops)==3:
                    self.src += [('s','vcc_lo'),('s','vcc_hi')]
        elif mn.startswith('ds_'):
            self.kind='ds'
            if mn.startswith(('ds_read','ds_bpermute','ds_permute','ds_swizzle')) or '_rtn' in mn:
                self.dst=R(0); self.src=sum([R(i) for i in range(1,len(self.ops))],[])
            else:
                self.src=sum([R(i) for i in range(0,len(self.ops))],[])
        elif mn.startswith(('buffer_','global_')):
            self.kind='vmem'
            islds = bool(re.search(r'\blds\b', rest)) or '_lds_' in mn
            if 'store' in mn or ('atomic' in mn):
                self.src=sum([R(i) for i in range(0,len(self.ops))],[])
            elif islds:
                self.src=sum([R(i) for i in range(0,len(self.ops))],[])+[('s','m0')]
            else:
                self.dst=R(0); self.src=sum([R(i) for i in range(1,len(self.ops))],[])
        elif mn.startswith('s_'):
            self.kind='salu'
            if mn.startswith(('s_cmp','s_cbranch','s_branch','s_waitcnt','s_barrier','s_endpgm','s_setprio','s_sleep','s_bitcmp')):
                self.src=sum([R(i) for i in range(0,len(self.ops))],[])
            else:
                self.dst=R(0); self.src=sum([R(i) for i in range(1,len(self.ops))],[])
                if 'saveexec' in mn: self.dst += [('s','exec_lo'),('s','exec_hi')]
        else:
            self.kind='other'
    def is_trans(self): return self.mn.replace('_e32','').replace('_e64','') in TRANS
    def is_dpp(self): return '_dpp' in self.mn or ' row_' in self.text or 'quad_perm' in self.text
    def wide_store(self):
        return self.kind=='vmem' and 'store' in self.mn and ('x3' in self.mn or 'x4' in self.mn)

def need_states(prod, cons):
    n = 0
    pd = set(prod.dst)
    pdv = {r for r in pd if r[0] in 'va'}
    pds = {r for r in pd if r[0]=='s'}
    cs = set(cons.src); cd = set(cons.dst)
    if prod.kind=='valu':
        if cons.kind=='mfma' and pdv & cs: n=max(n,2)
        if cons.kind=='valu':
            if prod.is_trans() and not cons.is_trans() and (pdv & cs): n=max(n,1)
            if cons.is_dpp() and (pdv & cs): n=max(n,2)
            if cons.mn.startswith(('v_readlane','v_readfirstlane')) and (pdv & cs): n=max(n,1)
            if cons.mn.startswith('v_permlane') and (pdv & cs): n=max(n,2)
            if pds & cs:
                if cons.mn.startswith(('v_readlane','v_writelane')) and len(cons.ops)>2 and (pds & set(parse_regs(cons.ops[2]))): n=max(n,4)
                else: n=max(n,2)
            if ('s','exec_lo') in pds and cons.is_dpp(): n=max(n,5)
            if ('s','exec_lo') in pds and cons.mn.startswith(('v_readlane','v_readfirstlane','v_writelane','v_permlane')): n=max(n,4)
            if 'sdwa' in prod.mn and (pdv & cs): n=max(n,1)
            if prod.mn.startswith('v_dot') and (pdv & (cs|cd)):
                if cons.mn==prod.mn and len(cons.ops)>3 and not (pdv & set(parse_regs(cons.ops[1])+parse_regs(cons.ops[2]))): pass
                else: n=max(n,3)
        if cons.kind=='mfma' and ('s','exec_lo') in pds: n=max(n,4)
        if cons.kind in ('vmem',) and (pds & cs): n=max(n,5)
        if cons.kind=='salu' and (pds & cs): n=max(n,1)
        if cons.kind=='ds' and 'tr_b16' in cons.mn and False: pass
    if prod.kind=='salu':
        if ('s','m0') in pd and ('s','m0') in cs: n=max(n,1)
    if prod.kind=='mfma':
        P = prod.passes
        tbl = {2:(2,5,4,1),4:(0,8,6,3),8:(0,12,10,7),16:(0,20,18,15)}[P]
        same0, raw, overl, war = tbl
        if cons.kind=='mfma':
            if pdv & set(cons.srcAB): n=max(n,raw)
            if pdv & set(cons.srcC):
                if prod.dst==cons.srcC and prod.passes==cons.passes: n=max(n,same0)
                else: n=max(n,overl)
            if (pdv & cd) and not (prod.dst==cons.srcC): n=max(n,raw)
        elif cons.kind in ('valu',):
            if pdv & (cs|cd): n=max(n,raw)
            if set(prod.srcC) & cd: n=max(n,war)
        elif cons.kind in ('ds','vmem'):
            if pdv & (cs|cd): n=max(n,raw)
    if prod.wide_store() and cons.kind=='valu':
        data=set(parse_regs(prod.ops[0]))
        if data & cd: n=max(n,2)
    if prod.kind=='ds' and prod.mn.startswith(('ds_write_b128','ds_write_b64','ds_write_b96')) and cons.kind=='valu':
        data=set(parse_regs(prod.ops[1]))
        if data & cd: n=max(n,1)
    return n

class Asm:
    def __init__(self):
        self.lines=[]
    def I(self, text):
        for t in text.strip().split('\n'):
            t=t.strip()
            if not t or t.startswith(';'):
                continue
            if t.endswith(':') and ' ' not in t:
                self.lines.append(('l',t[:-1]))
            else:
                self.lines.append(('i',Ins(t)))
    def label(self,name): self.lines.append(('l',name))
    def raw(self,text): self.lines.append(('t',text))
    def comment(self,text): self.lines.append(('t','; '+text))
    def pad(self, window=24):
        out=[]
        hist=[]
        nins=0
        for k,x in self.lines:
            if k!='i':
                out.append((k,x)); continue
            need=0
            dist=0
            for p in reversed(hist[-window:]):
                r=need_states(p,x)
                if r>dist: need=max(need,r-dist)
                dist+=p.states
                if dist>=21: break
            while need>0:
                n=min(need,16)
                nop=Ins(f's_nop {n-1}')
                out.append(('i',nop)); hist.append(nop); need-=n; nins+=1
            out.append((k,x)); hist.append(x)
            if x.mn in ('s_branch','s_endpgm'):
                hist=[]
        self.lines=out
        return nins
    def check_edge(self, from_idx_label_end, to_label):
        pass
    def text(self):
        s=[]
        for k,x in self.lines:
            if k=='i': s.append('    '+x.text)
            elif k=='l': s.append(x+':')
            else: s.append(x)
        return '\n'.join(s)+'\n'
    def check_branches(self, window=24):
        idx={}
        for i,(k,x) in enumerate(self.lines):
            if k=='l': idx[x]=i
        probs=[]
        for i,(k,x) in enumerate(self.lines):
            if k=='i' and (x.mn.startswith('s_cbranch') or x.mn=='s_branch'):
                tgt=x.ops[0]
                if tgt not in idx: continue
                before=[y for (kk,y) in self.lines[max(0,i-60):i+1] if kk=='i'][-window:]
                after=[y for (kk,y) in self.lines[idx[tgt]:idx[tgt]+60] if kk=='i'][:window]
                for ai,c in enumerate(after):
                    dist=sum(a.states for a in after[:ai])
                    for p in reversed(before):
                        r=need_states(p,c)
                        if r>dist:
                            probs.append((x.text, p.text, c.text, r, dist))
                        dist+=p.states
                        if dist>=21: break
        return probs
```

```python
import sys, math
sys.path.insert(0, 'gen')
from asmlib import Asm, Ins
import asmlib

N=10000; E=640000; NCH=250; CH=2560; NB=250; BN=40
LOG2E = 1.4426950408889634
LN2 = 0.6931471805599453
import struct
def f32bits(x): return struct.unpack('<I', struct.pack('<f', x))[0]
NEG_LOG2E = f32bits(-LOG2E)
NEG_LN2 = f32bits(-LN2)

WS_REC = 0
REC_BYTES = NCH*CH*16
WS_SEG = 0xA00000
SEG_BYTES = NCH*1024
WS_BP = 0xB00000
BP_BYTES = N*128

SP_B   = 0
SP_STRIDE = 2560
CNT2_B = 20480
WTOT_B = 20736
OH_B   = 20992
PD_B   = 21248
SR_B   = 22528
RC_B   = 28672
STG_B  = 53248
XT_B   = 86016
H_B    = 135168
MI_B   = 140288
WH_B   = 145408
LDS2   = 161792
MAP_B  = STG_B
WE1_B  = STG_B + 12288
CAPE   = 2816

K1_CNT = 0
K1_STA = 1024
K1_WE2 = 2048
K1_POS = 10240
K1_REC = K1_POS
LDS1   = K1_POS + 65536

def srd(a, d, base_lo, base_hi, nbytes, off=0):
    if off:
        a.I(f"s_add_u32 s{d}, s{base_lo}, {off}")
        a.I(f"s_addc_u32 s{d+1}, s{base_hi}, 0")
    else:
        a.I(f"s_mov_b32 s{d}, s{base_lo}")
        a.I(f"s_mov_b32 s{d+1}, s{base_hi}")
    a.I(f"s_mov_b32 s{d+2}, {nbytes}")
    a.I(f"s_mov_b32 s{d+3}, 0x20000")

def dpp_scan(a, v, nsteps=6):
    steps = ["row_shr:1 row_mask:0xf bank_mask:0xf bound_ctrl:0",
             "row_shr:2 row_mask:0xf bank_mask:0xf bound_ctrl:0",
             "row_shr:4 row_mask:0xf bank_mask:0xf bound_ctrl:0",
             "row_shr:8 row_mask:0xf bank_mask:0xf bound_ctrl:0",
             "row_bcast:15 row_mask:0xa bank_mask:0xf",
             "row_bcast:31 row_mask:0xc bank_mask:0xf"]
    for s in steps[:nsteps]:
        a.I(f"v_add_u32_dpp v{v}, v{v}, v{v} {s}")

def gen_k1(a):
    sH,sPOSp,sEAp,sSRCp,sDSTp,sWEp = 16,18,20,22,24,26
    sWS=32
    sPOS,sEA,sSRC,sDST,sWE,sHH,sREC,sSEG,sBP = 36,40,44,48,52,56,60,64,68
    sWave=72; sT0=73; sT1=74; sT2=75; sMaskHi=76; sNode0=77
    a.I(f"""
    s_cmp_ge_u32 s2, {NCH}
    s_cbranch_scc1 L_k1_end
    s_load_dwordx16 s[16:31], s[0:1], 0
    s_load_dwordx2 s[32:33], s[0:1], 80
    v_and_b32 v1, 63, v0
    v_lshrrev_b32 v2, 6, v0
    v_lshlrev_b32 v3, 2, v0
    v_mov_b32 v56, 0
    v_readfirstlane_b32 s{sWave}, v2
    v_cmp_gt_u32 vcc, 256, v0
    s_and_saveexec_b64 s[78:79], vcc
    ds_write_b32 v3, v56 offset:{K1_CNT}
    s_mov_b64 exec, s[78:79]
    s_mov_b32 s{sMaskHi}, 0xffff0000
    v_lshlrev_b32 v4, 4, v1
    s_waitcnt lgkmcnt(0)
    """)
    srd(a,sPOS,sPOSp,sPOSp+1,60000)
    srd(a,sWE,sWEp,sWEp+1,130*128)
    srd(a,sHH,sH,sH+1,N*128)
    srd(a,sSRC,sSRCp,sSRCp+1,E*4)
    srd(a,sDST,sDSTp,sDSTp+1,E*4)
    srd(a,sEA,sEAp,sEAp+1,E*2)
    a.I(f"s_lshl_b32 s{sT0}, s{sWave}, 10")
    for k in range(8):
        a.I(f"s_add_u32 s{sT1}, s{sT0}, {k*8192}")
        a.I(f"s_add_u32 m0, s{sT1}, {K1_POS}")
        a.I(f"s_nop 0")
        a.I(f"buffer_load_dwordx4 v4, s[{sPOS}:{sPOS+3}], s{sT1} offen lds")
    a.I(f"s_add_u32 s{sT1}, s{sT0}, 8192")
    a.I(f"s_add_u32 m0, s{sT0}, {K1_WE2}")
    a.I(f"s_nop 0")
    a.I(f"buffer_load_dwordx4 v4, s[{sWE}:{sWE+3}], s{sT1} offen lds")
    HA=88; HB=96
    a.I(f"""
    s_mul_i32 s{sNode0}, s2, {BN}
    s_cmp_lt_u32 s{sWave}, 4
    s_cselect_b32 s{sT1}, 0, 32
    s_add_u32 s{sT1}, s{sT1}, s{sNode0}
    v_and_b32 v5, 15, v1
    v_lshrrev_b32 v6, 4, v1
    v_add_u32 v7, s{sT1}, v5
    v_lshlrev_b32 v7, 7, v7
    v_lshl_add_u32 v7, v6, 4, v7
    s_add_u32 s{sT2}, s{sNode0}, 16
    v_add_u32 v8, s{sT2}, v5
    v_lshlrev_b32 v8, 7, v8
    v_lshl_add_u32 v8, v6, 4, v8
    buffer_load_dwordx4 v[{HA}:{HA+3}], v7, s[{sHH}:{sHH+3}], 0 offen
    buffer_load_dwordx4 v[{HA+4}:{HA+7}], v7, s[{sHH}:{sHH+3}], 0 offen offset:64
    buffer_load_dwordx4 v[{HB}:{HB+3}], v8, s[{sHH}:{sHH+3}], 0 offen
    buffer_load_dwordx4 v[{HB+4}:{HB+7}], v8, s[{sHH}:{sHH+3}], 0 offen offset:64
    """)
    S4=12; S1=16; D4=20; D1=24; E4=26; E1=28
    a.I(f"""
    s_mul_i32 s{sT0}, s2, {CH*4}
    s_mul_i32 s{sT1}, s2, {CH*2}
    v_lshlrev_b32 v9, 4, v0
    v_lshlrev_b32 v10, 3, v0
    v_lshlrev_b32 v11, 1, v0
    buffer_load_dwordx4 v[{D4}:{D4+3}], v9, s[{sDST}:{sDST+3}], s{sT0} offen
    buffer_load_dwordx4 v[{S4}:{S4+3}], v9, s[{sSRC}:{sSRC+3}], s{sT0} offen
    buffer_load_dwordx2 v[{E4}:{E4+1}], v10, s[{sEA}:{sEA+3}], s{sT1} offen
    s_add_u32 s{sT0}, s{sT0}, 8192
    s_add_u32 s{sT1}, s{sT1}, 4096
    buffer_load_dword v{D1}, v3, s[{sDST}:{sDST+3}], s{sT0} offen
    buffer_load_dword v{S1}, v3, s[{sSRC}:{sSRC+3}], s{sT0} offen
    buffer_load_ushort v{E1}, v11, s[{sEA}:{sEA+3}], s{sT1} offen
    """)
    srd(a,sREC,sWS,sWS+1,REC_BYTES,WS_REC)
    srd(a,sSEG,sWS,sWS+1,SEG_BYTES,WS_SEG)
    srd(a,sBP,sWS,sWS+1,BP_BYTES,WS_BP)
    a.I(f"""
    s_and_b32 s{sT0}, s{sWave}, 3
    s_lshl_b32 s{sT0}, s{sT0}, 5
    v_lshrrev_b32 v30, 2, v5
    v_lshl_add_u32 v30, v6, 3, v30
    v_lshlrev_b32 v30, 7, v30
    v_and_b32 v31, 3, v5
    v_lshl_add_u32 v30, v31, 3, v30
    v_add_u32 v30, s{sT0}, v30
    s_waitcnt vmcnt(10) lgkmcnt(0)
    s_barrier
    """)
    WA=80
    for s in range(2):
        for hf in range(2):
            a.I(f"ds_read_b64_tr_b16 v[{WA+4*s+2*hf}:{WA+4*s+2*hf+1}], v30 offset:{K1_WE2+4096*s+512*hf}")
    DA=104; DB=108
    a.I(f"""
    s_waitcnt vmcnt(6) lgkmcnt(0)
    v_mfma_f32_16x16x32_bf16 v[{DA}:{DA+3}], v[{WA}:{WA+3}], v[{HA}:{HA+3}], 0
    v_mfma_f32_16x16x32_bf16 v[{DB}:{DB+3}], v[{WA}:{WA+3}], v[{HB}:{HB+3}], 0
    v_mfma_f32_16x16x32_bf16 v[{DA}:{DA+3}], v[{WA+4}:{WA+7}], v[{HA+4}:{HA+7}], v[{DA}:{DA+3}]
    v_mfma_f32_16x16x32_bf16 v[{DB}:{DB+3}], v[{WA+4}:{WA+7}], v[{HB+4}:{HB+7}], v[{DB}:{DB+3}]
    """)
    a.I(f"""
    v_lshlrev_b32 v32, 3, v6
    v_sub_u32 v7, v7, v32
    v_sub_u32 v8, v8, v32
    v_add_u32 v7, s{sT0}, v7
    v_add_u32 v8, s{sT0}, v8
    s_mov_b32 s{sT1}, {NEG_LOG2E}
    """)
    for D in (DA,DB):
        for i in range(4):
            a.I(f"v_mul_f32 v{D+i}, s{sT1}, v{D+i}")
        a.I(f"v_cvt_pk_bf16_f32 v{D}, v{D}, v{D+1}")
        a.I(f"v_cvt_pk_bf16_f32 v{D+1}, v{D+2}, v{D+3}")
    a.I("s_waitcnt vmcnt(0)")
    a.I(f"""
    s_cmp_lt_u32 s{sWave}, 4
    s_cbranch_scc0 L_k1_hiw
    buffer_store_dwordx2 v[{DA}:{DA+1}], v7, s[{sBP}:{sBP+3}], 0 offen sc1
    buffer_store_dwordx2 v[{DB}:{DB+1}], v8, s[{sBP}:{sBP+3}], 0 offen sc1
    s_branch L_k1_gdone
    L_k1_hiw:
    v_cmp_gt_u32 vcc, 8, v5
    s_and_saveexec_b64 s[78:79], vcc
    buffer_store_dwordx2 v[{DA}:{DA+1}], v7, s[{sBP}:{sBP+3}], 0 offen sc1
    s_mov_b64 exec, s[78:79]
    L_k1_gdone:
    """)
    W=32
    RK=52
    BA=57
    PS=62
    PD=72
    T=82
    U=112
    ONE=30
    a.I(f"v_mov_b32 v{ONE}, 1")
    Sx=[S4,S4+1,S4+2,S4+3,S1]; Dx=[D4,D4+1,D4+2,D4+3,D1]
    for k in range(5):
        s=Sx[k]; d=Dx[k]
        a.I(f"""
        v_mul_u32_u24 v{T}, 6, v{s}
        v_mul_u32_u24 v{T+1}, 6, v{d}
        ds_read_b64 v[{PS+2*k}:{PS+2*k+1}], v{T} offset:{K1_POS}
        ds_read_b64 v[{PD+2*k}:{PD+2*k+1}], v{T+1} offset:{K1_POS}
        v_mul_u32_u24 v{T+2}, 52429, v{d}
        v_lshrrev_b32 v{T+2}, 18, v{T+2}
        v_lshrrev_b32 v{T+3}, 3, v{T+2}
        v_lshlrev_b32 v{BA+k}, 2, v{T+3}
        ds_add_rtn_u32 v{RK+k}, v{BA+k}, v{ONE} offset:{K1_CNT}
        v_mad_i32_i24 v{T+3}, v{T+2}, -5, v{d}
        v_and_b32 v{T+2}, 7, v{T+2}
        v_lshl_add_u32 v{T+2}, v{T+2}, 3, v{T+3}
        v_mul_u32_u24 v{U+k}, 320, v{T+2}
        v_lshl_or_b32 v{W+4*k+3}, v{T+2}, 16, v{s}
        """)
    for k in range(5):
        rem = 3*(4-k)+1
        a.I(f"s_waitcnt lgkmcnt({min(rem,15)})")
        ps=PS+2*k; pd=PD+2*k
        a.I(f"""
        v_lshlrev_b32 v{T}, 16, v{ps}
        v_and_b32 v{T+1}, s{sMaskHi}, v{ps}
        v_lshlrev_b32 v{T+2}, 16, v{ps+1}
        v_lshlrev_b32 v{T+3}, 16, v{pd}
        v_and_b32 v{T+4}, s{sMaskHi}, v{pd}
        v_lshlrev_b32 v{T+5}, 16, v{pd+1}
        v_sub_f32 v{T}, v{T+3}, v{T}
        v_sub_f32 v{T+1}, v{T+4}, v{T+1}
        v_sub_f32 v{T+2}, v{T+5}, v{T+2}
        v_cvt_pk_bf16_f32 v{T+6}, v{T}, v{T+1}
        v_cvt_pk_bf16_f32 v{T+7}, v{T+2}, 0
        v_dot2_f32_bf16 v{T+8}, v{T+7}, v{T+7}, 0
        v_lshl_or_b32 v{W+4*k}, v{T+6}, 16, v{U+k}
        v_dot2_f32_bf16 v{T+8}, v{T+6}, v{T+6}, v{T+8}
        v_alignbit_b32 v{W+4*k+1}, v{T+7}, v{T+6}, 16
        s_nop 1
        v_cvt_pk_bf16_f32 v{T+9}, v{T+8}, 0
        """)
        if k<4:
            e=E4+k//2
            if k%2==0: a.I(f"v_lshl_or_b32 v{W+4*k+2}, v{e}, 16, v{T+9}")
            else:      a.I(f"v_and_or_b32 v{W+4*k+2}, v{e}, s{sMaskHi}, v{T+9}")
        else:
            a.I(f"v_lshl_or_b32 v{W+4*k+2}, v{E1}, 16, v{T+9}")
    a.I(f"""
    s_waitcnt lgkmcnt(0)
    s_barrier
    s_cmp_lg_u32 s{sWave}, 0
    s_cbranch_scc1 L_k1_noscan
    v_lshlrev_b32 v{T}, 4, v1
    ds_read_b128 v[84:87], v{T} offset:{K1_CNT}
    s_waitcnt lgkmcnt(0)
    v_add_u32 v88, v84, v85
    v_add_u32 v89, v88, v86
    v_add_u32 v90, v89, v87
    v_mov_b32 v91, v90
    """)
    dpp_scan(a,91)
    a.I(f"""
    v_sub_u32 v92, v91, v90
    v_add_u32 v93, v92, v84
    v_add_u32 v94, v92, v88
    v_add_u32 v95, v92, v89
    ds_write_b128 v{T}, v[92:95] offset:{K1_STA}
    v_lshl_or_b32 v96, v84, 16, v92
    v_lshl_or_b32 v97, v85, 16, v93
    v_lshl_or_b32 v98, v86, 16, v94
    v_lshl_or_b32 v99, v87, 16, v95
    s_lshl_b32 s{sT0}, s2, 10
    buffer_store_dwordx4 v[96:99], v{T}, s[{sSEG}:{sSEG+3}], s{sT0} offen sc1
    s_waitcnt lgkmcnt(0)
    L_k1_noscan:
    s_barrier
    """)
    for k in range(5):
        a.I(f"ds_read_b32 v{T+k}, v{BA+k} offset:{K1_STA}")
    for k in range(5):
        a.I(f"s_waitcnt lgkmcnt({4-k+k})" if False else f"s_waitcnt lgkmcnt({4})")
        a.I(f"v_add_u32 v{T+k}, v{T+k}, v{RK+k}")
        a.I(f"v_lshlrev_b32 v{T+k}, 4, v{T+k}")
        a.I(f"ds_write_b128 v{T+k}, v[{W+4*k}:{W+4*k+3}] offset:{K1_REC}")
    a.I(f"""
    s_waitcnt lgkmcnt(0)
    s_barrier
    v_lshlrev_b32 v{T}, 4, v0
    """)
    for k in range(5):
        a.I(f"ds_read_b128 v[{W+4*k}:{W+4*k+3}], v{T} offset:{K1_REC+8192*k}")
    a.I(f"s_mul_i32 s{sT0}, s2, {CH*16}")
    for k in range(5):
        a.I(f"s_waitcnt lgkmcnt({4-k})")
        a.I(f"buffer_store_dwordx4 v[{W+4*k}:{W+4*k+3}], v{T}, s[{sREC}:{sREC+3}], s{sT0} offen sc1")
        if k<4: a.I(f"s_add_u32 s{sT0}, s{sT0}, 8192")
    a.I("L_k1_end:")
    a.I("s_endpgm")

def gen_k2(a):
    sH,sPOSp,sEAp,sSRCp,sDSTp,sWEp,sWXp,sWHp = 16,18,20,22,24,26,28,30
    sWS=32; sOUTp=34
    sSEG,sREC,sBP,sWE,sHH,sWH,sOUT,sPOUT,sPOS,sWX = 36,40,44,48,52,56,60,64,68,72
    sWave=76; sT0=77; sT1=78; sT2=79
    sHHM=80
    sSave=82
    sV=84
    sT=96; sBeta=97; sTb=98; sGs=99; sG=100; sPT=101
    sNT=16
    sStg=17; sMaskHi=18; sPrev=19; sE0=20; sOOB=21; sM0=22; sC1=23; sC2=24; sLo=25
    vA=2; vC=6; vXa=10; vRa=11; vSa=12; vSp=13; vH160=14; vOne=15; vZero=16
    vt0=17; vt1=18; vt2=19
    VOFF=20; SRv=24; RCv=26; sAddr=28; sData=29; vt3=30; vt4=31
    ID=32; XB=40; XOP=48; AOP=52; SOPA=68; SOPB=76; M=84; T=100; ACC=116; DA=148; DB=180
    REC=DA
    RK=T; BIN=T+6
    vSeg=T+12; vCnt=T+13; vStart=T+14; vP=T+15
    WOP=DB
    vWD=M
    vWX=M+4
    vWXk=212
    a.I(f"""
    s_cmp_ge_u32 s2, {NB}
    s_cbranch_scc1 L_k2_end
    s_load_dwordx16 s[16:31], s[0:1], 0
    s_load_dwordx2 s[34:35], s[0:1], 64
    s_load_dwordx2 s[32:33], s[0:1], 80
    v_and_b32 v1, 63, v0
    v_lshrrev_b32 v{vt0}, 6, v0
    v_mov_b32 v{vZero}, 0
    v_readfirstlane_b32 s{sWave}, v{vt0}
    """)
    for i in range(4): a.I(f"v_mov_b32 v{T+i}, 0")
    a.I(f"""
    s_mul_i32 s{sT0}, s{sWave}, {SP_STRIDE}
    v_lshlrev_b32 v{vt1}, 4, v1
    v_add_u32 v{vt2}, s{sT0}, v{vt1}
    ds_write_b128 v{vt2}, v[{T}:{T+3}] offset:{SP_B}
    ds_write_b128 v{vt2}, v[{T}:{T+3}] offset:{SP_B+1024}
    v_lshlrev_b32 v{T+7}, 2, v1
    s_mov_b32 exec_hi, 0
    ds_write_b128 v{vt2}, v[{T}:{T+3}] offset:{SP_B+2048}
    v_lshrrev_b32 v{vt3}, 2, v1
    v_and_b32 v{vt4}, 3, v1
    v_lshrrev_b32 v{T+4}, 1, v{vt3}
    v_add_u32 v{T+4}, 1, v{T+4}
    v_and_b32 v{T+5}, 1, v{vt3}
    v_lshlrev_b32 v{T+5}, 4, v{T+5}
    v_mov_b32 v{T+6}, 0x3f80
    v_lshlrev_b32 v{T+6}, v{T+5}, v{T+6}
    v_cmp_eq_u32 vcc, v{T+4}, v{vt4}
    v_cndmask_b32 v{T+6}, 0, v{T+6}, vcc
    ds_write_b32 v{T+7}, v{T+6} offset:{OH_B}
    s_mov_b64 exec, -1
    ds_write_b32 v{T+7}, v{vZero} offset:{CNT2_B}
    s_mov_b32 s{sHHM}, 0
    s_mov_b32 s{sHHM+1}, -1
    s_waitcnt lgkmcnt(0)
    """)
    srd(a,sSEG,sWS,sWS+1,SEG_BYTES,WS_SEG)
    a.I(f"""
    v_lshrrev_b32 v{vt3}, 1, v0
    v_lshlrev_b32 v{vt4}, 10, v{vt3}
    s_lshl_b32 s{sT0}, s2, 2
    buffer_load_dword v{vSeg}, v{vt4}, s[{sSEG}:{sSEG+3}], s{sT0} offen
    """)
    srd(a,sWE,sWEp,sWEp+1,130*128)
    srd(a,sHH,sH,sH+1,N*128)
    srd(a,sWH,sWHp,sWHp+1,128*128)
    srd(a,sWX,sWXp,sWXp+1,128)
    a.I(f"""
    s_lshl_b32 s{sT0}, s{sWave}, 10
    s_add_u32 m0, s{sT0}, {WE1_B}
    s_mul_i32 s{sT1}, s2, {BN*128}
    buffer_load_dwordx4 v{vt1}, s[{sWE}:{sWE+3}], s{sT0} offen lds
    s_add_u32 m0, s{sT0}, {H_B}
    s_add_u32 s{sT1}, s{sT1}, s{sT0}
    buffer_load_dwordx4 v{vt1}, s[{sHH}:{sHH+3}], s{sT1} offen lds
    v_and_b32 v{vt2}, 31, v1
    v_lshlrev_b32 v{vt2}, 1, v{vt2}
    s_mov_b32 s{sT2}, {128*128}
    buffer_load_ushort v{vWD}, v{vt2}, s[{sWE}:{sWE+3}], s{sT2} offen
    buffer_load_ushort v{vWD+1}, v{vt2}, s[{sWE}:{sWE+3}], s{sT2} offen offset:128
    buffer_load_ushort v{vWD+2}, v{vt2}, s[{sWE}:{sWE+3}], s{sT2} offen offset:64
    buffer_load_ushort v{vWD+3}, v{vt2}, s[{sWE}:{sWE+3}], s{sT2} offen offset:192
    s_lshl_b32 s{sT1}, s{sWave}, 11
    s_add_u32 m0, s{sT1}, {WH_B}
    s_nop 0
    buffer_load_dwordx4 v{vt1}, s[{sWH}:{sWH+3}], s{sT1} offen lds
    s_add_u32 s{sT1}, s{sT1}, 1024
    s_add_u32 m0, s{sT1}, {WH_B}
    s_nop 0
    buffer_load_dwordx4 v{vt1}, s[{sWH}:{sWH+3}], s{sT1} offen lds
    buffer_load_ushort v{vWX}, v{vt2}, s[{sWX}:{sWX+3}], 0 offen
    buffer_load_ushort v{vWX+1}, v{vt2}, s[{sWX}:{sWX+3}], 0 offen offset:64
    """)
    srd(a,sREC,sWS,sWS+1,REC_BYTES,WS_REC)
    srd(a,sBP,sWS,sWS+1,BP_BYTES,WS_BP)
    srd(a,sOUT,sOUTp,sOUTp+1,N*128,0)
    srd(a,sPOUT,sOUTp,sOUTp+1,60000,N*128)
    srd(a,sPOS,sPOSp,sPOSp+1,60000)
    a.I(f"s_mov_b32 s{sMaskHi}, 0xffff0000")
    a.I(f"""
    v_and_b32 v{vt0}, 31, v1          ; e
    v_lshrrev_b32 v{vt1}, 5, v1        ; hh
    v_and_b32 v{vt2}, 0x13, v{vt0}
    v_and_b32 v{vt3}, 4, v{vt0}
    v_lshl_or_b32 v{vt2}, v{vt3}, 1, v{vt2}
    v_and_b32 v{vt3}, 8, v{vt0}
    v_lshrrev_b32 v{vt3}, 1, v{vt3}
    v_or_b32 v{vt2}, v{vt2}, v{vt3}    ; s(e)
    v_mov_b32 v{vXa}, v{vt2}
    ; rho = 8*(s&3) + (s>>2)
    v_and_b32 v{vt3}, 3, v{vt2}
    v_lshlrev_b32 v{vt3}, 3, v{vt3}
    v_lshrrev_b32 v{vt4}, 2, v{vt2}
    v_add_u32 v{vt3}, v{vt3}, v{vt4}   ; rho
    v_lshrrev_b32 v{vt4}, 2, v{vt3}
    v_xor_b32 v{vt4}, v{vt4}, v{vt1}   ; f ^ hh
    v_lshlrev_b32 v{vt4}, 4, v{vt4}
    v_lshlrev_b32 v{vt3}, 7, v{vt3}    ; rho*128
    s_lshl_b32 s{sStg}, s{sWave}, 12
    s_add_u32 s{sStg}, s{sStg}, {STG_B}
    v_add_u32 v{vt3}, s{sStg}, v{vt3}
    """)
    for ct in range(2):
        for sp in range(2):
            x=(4*ct+2*sp)*16
            a.I(f"v_xor_b32 v{T}, {x}, v{vt4}")
            a.I(f"v_add_u32 v{vA+2*ct+sp}, v{vt3}, v{T}")
    a.I(f"""
    v_lshrrev_b32 v{T}, 3, v1
    v_and_b32 v{T+1}, 7, v1
    v_lshrrev_b32 v{T+2}, 2, v{T}
    v_xor_b32 v{T+1}, v{T+1}, v{T+2}
    v_lshlrev_b32 v{T+1}, 4, v{T+1}
    """)
    for i in range(4):
        a.I(f"v_xor_b32 v{vC+i}, {32*i}, v{T+1}")
    a.I(f"""
    v_lshlrev_b32 v{vSa}, 3, v{T}       ; 4*g8*2 bytes
    v_mul_u32_u24 v{vH160}, 160, v{vt1}
    v_mov_b32 v{vOne}, 0x3f80
    s_mul_i32 s{sT0}, s{sWave}, {SP_STRIDE}
    v_mul_u32_u24 v{vSp}, 80, v{vt0}
    v_lshl_add_u32 v{vSp}, v{vt1}, 4, v{vSp}
    v_add_u32 v{vSp}, s{sT0}, v{vSp}
    v_lshlrev_b32 v{T}, 3, v{vt1}
    v_sub_u32 v{T}, v{vt0}, v{T}
    v_mov_b32 v{T+1}, 0x3f800000
    """)
    for sp in range(2):
        for p in range(4):
            a.I(f"v_cmp_eq_u32 vcc, {16*sp+2*p}, v{T}")
            a.I(f"v_cndmask_b32 v{ID+4*sp+p}, 0, v{vOne}, vcc")
            a.I(f"v_cmp_eq_u32 vcc, {16*sp+2*p+1}, v{T}")
            a.I(f"v_cndmask_b32 v{ID+4*sp+p}, v{ID+4*sp+p}, v{T+1}, vcc")
    a.I(f"""
    s_waitcnt vmcnt(10)
    v_lshrrev_b32 v{vCnt}, 16, v{vSeg}
    v_and_b32 v{vStart}, 0xffff, v{vSeg}
    v_and_b32 v{T}, 1, v0
    v_cmp_eq_u32 vcc, 0, v{T}
    v_cndmask_b32 v{vP}, 0, v{vCnt}, vcc
    """)
    dpp_scan(a,vP)
    a.I(f"""
    s_lshl_b32 s{sT0}, s{sWave}, 2
    v_mov_b32 v{T+1}, s{sT0}
    s_mov_b32 exec_lo, 0
    s_mov_b32 exec_hi, 0x80000000
    ds_write_b32 v{T+1}, v{vP} offset:{WTOT_B}
    s_mov_b64 exec, -1
    s_waitcnt lgkmcnt(0)
    s_barrier
    v_and_b32 v{T+1}, 7, v1
    v_lshlrev_b32 v{T+1}, 2, v{T+1}
    ds_read_b32 v{T+2}, v{T+1} offset:{WTOT_B}
    s_waitcnt lgkmcnt(0)
    """)
    dpp_scan(a,T+2,3)
    a.I(f"""
    s_sub_u32 s{sT0}, s{sWave}, 1
    s_and_b32 s{sT0}, s{sT0}, 7
    v_readlane_b32 s{sT}, v{T+2}, 7
    v_readlane_b32 s{sPrev}, v{T+2}, s{sT0}
    s_min_u32 s{sT}, s{sT}, {E}
    s_cmp_eq_u32 s{sWave}, 0
    s_cselect_b32 s{sPrev}, 0, s{sPrev}
    v_sub_u32 v{vP}, v{vP}, v{vCnt}
    v_add_u32 v{vP}, s{sPrev}, v{vP}
    v_lshrrev_b32 v{T+1}, 1, v0
    v_mul_u32_u24 v{T+1}, {CH}, v{T+1}
    v_add_u32 v{vStart}, v{vStart}, v{T+1}
    v_lshlrev_b32 v{vStart}, 4, v{vStart}
    s_mov_b32 s{sBeta}, 0
    """)
    for i in range(32): a.I(f"v_mov_b32 v{ACC+i}, 0") if False else None
    vKc=214; vKs=215; vKp=216
    a.I(f"""
    v_mov_b32 v{vKc}, v{vCnt}
    v_mov_b32 v{vKs}, v{vStart}
    v_mov_b32 v{vKp}, v{vP}
    s_mov_b32 s{sE0}, 1
    L_k2_batch:
    v_sub_u32 v{T}, s{sBeta}, v{vKp}
    v_max_i32 v{T+1}, 0, v{T}
    v_add_u32 v{T+2}, {CAPE}, v{T}
    v_min_i32 v{T+2}, v{T+2}, v{vKc}
    v_and_b32 v{T+3}, 1, v0
    v_add_u32 v{T+1}, v{T+1}, v{T+3}      ; j
    v_sub_u32 v{T+4}, v{T+1}, v{T}         ; P + j - beta
    v_lshlrev_b32 v{T+4}, 2, v{T+4}
    v_add_u32 v{T+4}, {MAP_B}, v{T+4}
    v_lshl_add_u32 v{T+5}, v{T+1}, 4, v{vKs}
    L_k2_map:
    v_cmp_lt_i32 vcc, v{T+1}, v{T+2}
    s_and_b64 exec, exec, vcc
    s_cbranch_scc0 L_k2_mapdone
    ds_write_b32 v{T+4}, v{T+5}
    v_add_u32 v{T+1}, 2, v{T+1}
    v_add_u32 v{T+4}, 8, v{T+4}
    v_add_u32 v{T+5}, 32, v{T+5}
    s_branch L_k2_map
    L_k2_mapdone:
    s_mov_b64 exec, -1
    s_sub_u32 s{sTb}, s{sT}, s{sBeta}
    s_min_u32 s{sTb}, s{sTb}, {CAPE}
    s_waitcnt vmcnt(8) lgkmcnt(0)
    s_barrier
    """)
    a.I(f"""
    v_lshlrev_b32 v{vt0}, 2, v0
    v_add_u32 v{vt0}, {MAP_B}, v{vt0}
    v_mov_b32 v{vt1}, 0x7ffffff0
    """)
    for k in range(6):
        a.I(f"ds_read_b32 v{RK+k}, v{vt0} offset:{2048*k}")
    for k in range(6):
        a.I(f"s_sub_i32 s{sT0}, s{sTb}, {512*k}")
        a.I(f"v_cmp_gt_i32 s[{sV+2*k}:{sV+2*k+1}], s{sT0}, v0")
    for k in range(6):
        a.I(f"s_waitcnt lgkmcnt({5-k})")
        a.I(f"v_cndmask_b32 v{RK+k}, v{vt1}, v{RK+k}, s[{sV+2*k}:{sV+2*k+1}]")
        a.I(f"buffer_load_dwordx4 v[{REC+4*k}:{REC+4*k+3}], v{RK+k}, s[{sREC}:{sREC+3}], 0 offen")
    a.I(f"""
    s_cmp_eq_u32 s{sE0}, 0
    s_cbranch_scc1 L_k2_skipA
    s_mov_b32 s{sE0}, 0
    v_lshrrev_b32 v{vt0}, 4, v1          ; G
    v_and_b32 v{vt1}, 15, v1             ; i
    v_lshrrev_b32 v{vt2}, 1, v{vt0}
    v_lshlrev_b32 v{vt2}, 3, v{vt2}
    v_lshrrev_b32 v{vt3}, 2, v{vt1}
    v_add_u32 v{vt2}, v{vt2}, v{vt3}
    v_lshlrev_b32 v{vt2}, 7, v{vt2}
    v_and_b32 v{vt3}, 1, v{vt0}
    v_lshl_add_u32 v{vt2}, v{vt3}, 5, v{vt2}
    v_and_b32 v{vt3}, 3, v{vt1}
    v_lshl_add_u32 v{vt2}, v{vt3}, 3, v{vt2}
    v_add_u32 v{vt2}, {WE1_B}, v{vt2}
    """)
    for ct in range(2):
        for s in range(4):
            for hf in range(2):
                r=WOP+(ct*4+s)*4+hf*2
                a.I(f"ds_read_b64_tr_b16 v[{r}:{r+1}], v{vt2} offset:{2048*s+512*hf+64*ct}")
    a.I(f"""
    v_and_b32 v{vt0}, 31, v1
    v_lshrrev_b32 v{vt1}, 3, v{vt0}
    v_lshlrev_b32 v{vt1}, 2, v{vt1}
    v_and_b32 v{vt3}, 3, v{vt0}
    v_add_u32 v{vt1}, v{vt1}, v{vt3}      ; m
    s_mul_i32 s{sT0}, s{sWave}, 5
    v_add_u32 v{vt1}, s{sT0}, v{vt1}
    v_lshlrev_b32 v{vt1}, 7, v{vt1}
    v_lshrrev_b32 v{vt3}, 5, v1
    v_lshl_add_u32 v{vt1}, v{vt3}, 4, v{vt1}
    v_add_u32 v{vt1}, {H_B}, v{vt1}
    """)
    for s in range(4):
        a.I(f"ds_read_b128 v[{AOP+4*s}:{AOP+4*s+3}], v{vt1} offset:{32*s}")
    a.I("s_waitcnt lgkmcnt(0)")
    for s in range(4):
        for ct in range(2):
            r=WOP+(ct*4+s)*4
            c = "0" if s==0 else f"v[{ACC+16*ct}:{ACC+16*ct+15}]"
            a.I(f"v_mfma_f32_32x32x16_bf16 v[{ACC+16*ct}:{ACC+16*ct+15}], v[{AOP+4*s}:{AOP+4*s+3}], v[{r}:{r+3}], {c}")
    a.I(f"""
    s_waitcnt vmcnt(10)
    s_mov_b32 s{sC1}, {NEG_LOG2E}
    """)
    def hilo(x0,x1,dst,t):
        a.I(f"v_cvt_pk_bf16_f32 v{t}, v{x0}, v{x1}")
        a.I(f"v_lshlrev_b32 v{t+1}, 16, v{t}")
        a.I(f"v_and_b32 v{t+2}, s{sMaskHi}, v{t}")
        a.I(f"v_sub_f32 v{t+1}, v{x0}, v{t+1}")
        a.I(f"v_sub_f32 v{t+2}, v{x1}, v{t+2}")
        a.I(f"v_cvt_pk_bf16_f32 v{t+1}, v{t+1}, v{t+2}")
        a.I(f"v_cndmask_b32 v{dst}, v{t}, v{t+1}, s[{sHHM}:{sHHM+1}]")
    tt=M+8
    for ct in range(2):
        wd=vWD+2*ct; wa=vWD+2*ct+1
        a.I(f"v_lshlrev_b32 v{wd}, 16, v{wd}")
        a.I(f"v_lshlrev_b32 v{wa}, 16, v{wa}")
        a.I(f"v_mul_f32 v{wd}, s{sC1}, v{wd}")
        a.I(f"v_mul_f32 v{wa}, s{sC1}, v{wa}")
        hilo(wd,wa,XB+4*ct,tt)
    for ct in range(2):
        for i in range(5):
            a.I(f"v_mul_f32 v{ACC+16*ct+i}, s{sC1}, v{ACC+16*ct+i}")
        a.I(f"v_mov_b32 v{ACC+16*ct+5}, 0")
        hilo(ACC+16*ct,ACC+16*ct+1,XB+4*ct+1,tt)
        hilo(ACC+16*ct+2,ACC+16*ct+3,XB+4*ct+2,tt)
        hilo(ACC+16*ct+4,ACC+16*ct+5,XB+4*ct+3,tt)
    for i in range(32): a.I(f"v_mov_b32 v{ACC+i}, 0")
    a.I(f"""
    s_waitcnt vmcnt(6)
    s_mov_b32 s{sC2}, {NEG_LN2}
    v_lshlrev_b32 v{vWX}, 16, v{vWX}
    v_lshlrev_b32 v{vWX+1}, 16, v{vWX+1}
    v_mul_f32 v{vWXk}, s{sC2}, v{vWX}
    v_mul_f32 v{vWXk+1}, s{sC2}, v{vWX+1}
    L_k2_skipA:
    """)
    a.I(f"""
    v_and_b32 v{vt0}, 7, v1
    v_lshlrev_b32 v{vt0}, 2, v{vt0}
    v_mov_b32 v{vt1}, 1
    s_movk_i32 s{sT0}, 0xe0
    """)
    for k in range(6):
        a.I(f"s_waitcnt vmcnt({5-k})")
        a.I(f"v_lshrrev_b32 v{BIN+k}, 14, v{REC+4*k+3}")
        a.I(f"v_and_or_b32 v{BIN+k}, v{BIN+k}, s{sT0}, v{vt0}")
        a.I(f"s_mov_b64 exec, s[{sV+2*k}:{sV+2*k+1}]")
        a.I(f"ds_add_rtn_u32 v{RK+k}, v{BIN+k}, v{vt1} offset:{CNT2_B}")
        a.I(f"s_mov_b64 exec, -1")
    a.I(f"""
    s_waitcnt lgkmcnt(0)
    s_barrier
    v_lshlrev_b32 v{vt0}, 2, v1
    ds_read_b32 v{vt1}, v{vt0} offset:{CNT2_B}
    s_waitcnt lgkmcnt(0)
    v_mov_b32 v{vt2}, v{vt1}
    s_nop 1
    v_add_u32_dpp v{vt2}, v{vt2}, v{vt2} quad_perm:[1,0,3,2] row_mask:0xf bank_mask:0xf
    v_add_u32_dpp v{vt2}, v{vt2}, v{vt2} quad_perm:[2,3,0,1] row_mask:0xf bank_mask:0xf
    v_add_u32_dpp v{vt2}, v{vt2}, v{vt2} row_half_mirror row_mask:0xf bank_mask:0xf
    v_add_u32 v{vt3}, 31, v{vt2}
    v_and_b32 v{vt3}, -32, v{vt3}          ; PT
    v_sub_u32 v{vt4}, v{vt3}, v{vt2}       ; pad
    v_and_b32 v{vt0}, 7, v1
    v_cmp_eq_u32 vcc, 7, v{vt0}
    v_cndmask_b32 v{vt4}, 0, v{vt4}, vcc
    v_add_u32 v{vt1}, v{vt1}, v{vt4}        ; cnt'
    v_mov_b32 v{vt4}, v{vt1}
    """)
    dpp_scan(a,vt4)
    a.I(f"""
    v_sub_u32 v{vt4}, v{vt4}, v{vt1}        ; start
    s_lshl_b32 s{sT0}, s{sWave}, 3
    v_readlane_b32 s{sG}, v{vt2}, s{sT0}
    v_readlane_b32 s{sPT}, v{vt3}, s{sT0}
    v_readlane_b32 s{sGs}, v{vt4}, s{sT0}
    """)
    XO=AOP
    for k in range(6):
        a.I(f"ds_bpermute_b32 v{M+k}, v{BIN+k}, v{vt4}")
    for k in range(6):
        a.I(f"v_lshrrev_b32 v{M+6+k}, 12, v{REC+4*k+3}")
        a.I(f"v_and_b32 v{M+6+k}, 0x70, v{M+6+k}")
        a.I(f"ds_read_b128 v[{XO+4*k}:{XO+4*k+3}], v{M+6+k} offset:{OH_B}")
    a.I(f"s_mov_b32 s{sT1}, {XT_B}")
    for k in range(6):
        a.I(f"s_waitcnt lgkmcnt({min(15,(5-k)+6)})" if k==0 else "")
    a.I(f"s_waitcnt lgkmcnt(6)")
    for k in range(6):
        a.I(f"v_add_u32 v{M+k}, v{M+k}, v{RK+k}")
        a.I(f"v_and_b32 v{M+6+k}, 31, v{M+k}")
        a.I(f"v_lshl_add_u32 v{REC+4*k}, v{M+6+k}, 1, v{REC+4*k}")
    a.I(f"s_waitcnt lgkmcnt(0)")
    for k in range(6):
        a.I(f"v_mov_b32 v{XO+4*k}, v{REC+4*k+2}")
        a.I(f"v_lshl_add_u32 v{M+6+k}, v{M+k}, 4, s{sT1}")
        a.I(f"v_lshlrev_b32 v{BIN+k}, 3, v{M+k}")
        a.I(f"v_lshlrev_b32 v{RK+k}, 1, v{M+k}")
        a.I(f"s_mov_b64 exec, s[{sV+2*k}:{sV+2*k+1}]")
        a.I(f"ds_write_b128 v{M+6+k}, v[{XO+4*k}:{XO+4*k+3}]")
        a.I(f"ds_write_b64 v{BIN+k}, v[{REC+4*k}:{REC+4*k+1}] offset:{RC_B}")
        a.I(f"ds_write_b16 v{RK+k}, v{REC+4*k+3} offset:{SR_B}")
        a.I(f"s_mov_b64 exec, -1")
    a.I(f"""
    s_sub_u32 s{sT0}, s{sPT}, s{sG}
    s_add_u32 s{sT2}, s{sGs}, s{sG}
    v_add_u32 v{vt0}, s{sT2}, v1
    v_cmp_gt_u32 vcc, s{sT0}, v1
    s_and_saveexec_b64 s[{sSave}:{sSave+1}], vcc
    s_cbranch_execz L_k2_nopad
    v_lshl_add_u32 v{vt1}, v{vt0}, 4, s{sT1}
    v_mov_b32 v{T}, 0
    v_mov_b32 v{T+1}, 0
    v_mov_b32 v{T+2}, 0
    v_mov_b32 v{T+3}, 0
    ds_write_b128 v{vt1}, v[{T}:{T+3}]
    s_mul_i32 s{sT0}, s{sWave}, {SP_STRIDE}
    s_add_u32 s{sT0}, s{sT0}, {SP_B+7*320}
    v_and_b32 v{vt2}, 31, v{vt0}
    v_lshl_add_u32 v{T}, v{vt2}, 1, s{sT0}
    v_lshlrev_b32 v{vt2}, 3, v{vt0}
    ds_write_b64 v{vt2}, v[{T}:{T+1}] offset:{RC_B}
    v_lshlrev_b32 v{vt2}, 1, v{vt0}
    v_mov_b32 v{T+2}, 0xffff
    ds_write_b16 v{vt2}, v{T+2} offset:{SR_B}
    L_k2_nopad:
    s_mov_b64 exec, s[{sSave}:{sSave+1}]
    s_lshr_b32 s{sNT}, s{sPT}, 5
    s_min_u32 s{sNT}, s{sNT}, 96
    """)
    a.I(f"""
    v_and_b32 v{vt0}, 31, v1
    v_and_b32 v{vt2}, 0x13, v{vt0}
    v_and_b32 v{vt3}, 4, v{vt0}
    v_lshl_or_b32 v{vt2}, v{vt3}, 1, v{vt2}
    v_and_b32 v{vt3}, 8, v{vt0}
    v_lshrrev_b32 v{vt3}, 1, v{vt3}
    v_or_b32 v{vt2}, v{vt2}, v{vt3}    ; s(e)
    v_add_u32 v{vt2}, s{sGs}, v{vt2}
    v_lshl_add_u32 v{vXa}, v{vt2}, 4, s{sT1}
    v_lshlrev_b32 v{vRa}, 3, v{vt2}
    v_add_u32 v{vRa}, {RC_B}, v{vRa}
    v_lshrrev_b32 v{vt0}, 3, v1
    v_lshlrev_b32 v{vt0}, 3, v{vt0}
    s_lshl_b32 s{sT0}, s{sGs}, 1
    s_add_u32 s{sT0}, s{sT0}, {SR_B}
    v_add_u32 v{vSa}, s{sT0}, v{vt0}
    s_waitcnt lgkmcnt(0)
    s_barrier
    s_cmp_eq_u32 s{sNT}, 0
    s_cbranch_scc1 L_k2_tilesdone
    """)

    def dma(srv):
        L=[]
        for i in range(4):
            osel = "op_sel:[1,0,0,0]" if i%2 else ""
            L.append(f"v_mad_u32_u16 v{VOFF+i}, v{srv+i//2}, s{sC128}, v{vC+i} {osel}".strip())
        D=[]
        for i in range(4):
            D.append([f"s_add_u32 m0, s{sStg}, {1024*i}", "s_nop 0" , f"buffer_load_dwordx4 v{VOFF+i}, s[{sBP}:{sBP+3}], 0 offen lds"])
        return L,D
    sC128=sLo
    a.I(f"s_movk_i32 s{sC128}, 128")
    def reads_next():
        R=[]
        for q in range(4):
            R.append(f"ds_read_b128 v[{AOP+4*q}:{AOP+4*q+3}], v{vA+q}")
        R.append(f"ds_read_b128 v[{XOP}:{XOP+3}], v{vXa}")
        R.append(f"ds_read_b64 v[{RCv}:{RCv+1}], v{vRa}")
        R.append(f"ds_read_b64 v[{SRv}:{SRv+1}], v{vSa}")
        return R
    def adv():
        return [f"v_add_u32 v{vXa}, 512, v{vXa}", f"v_add_u32 v{vRa}, 256, v{vRa}", f"v_add_u32 v{vSa}, 64, v{vSa}"]
    def pre_mfma(D,ct):
        d=f"v[{D+16*ct}:{D+16*ct+15}]"
        return [f"v_mfma_f32_32x32x16_bf16 {d}, v[{XOP}:{XOP+3}], v[{XB+4*ct}:{XB+4*ct+3}], 0",
                f"v_mfma_f32_32x32x16_bf16 {d}, v[{AOP+8*ct}:{AOP+8*ct+3}], v[{ID}:{ID+3}], {d}",
                f"v_mfma_f32_32x32x16_bf16 {d}, v[{AOP+8*ct+4}:{AOP+8*ct+7}], v[{ID+4}:{ID+7}], {d}"]
    def sp_valu():
        return [f"v_mad_u32_u16 v{sAddr}, v{RCv}, 1, v{vH160}",
                f"v_and_or_b32 v{sData}, v{RCv}, s{sMaskHi}, v{vOne}",
                f"v_cndmask_b32 v{sData}, v{sData}, v{RCv+1}, s[{sHHM}:{sHHM+1}]"]
    def sp_lds(SOP):
        return [f"ds_write_b16 v{sAddr}, v{sData}",
                f"ds_write_b16_d16_hi v{sAddr}, v{sData} offset:80",
                f"ds_read_b128 v[{SOP}:{SOP+3}], v{vSp}",
                f"ds_read_b128 v[{SOP+4}:{SOP+7}], v{vSp} offset:32",
                f"ds_write_b16 v{sAddr}, v{vZero}",
                f"ds_write_b16 v{sAddr}, v{vZero} offset:80"]
    def seg_mfma(SOP,q):
        ct,st=q//2,q%2
        acc=f"v[{ACC+16*ct}:{ACC+16*ct+15}]"
        return f"v_mfma_f32_32x32x16_bf16 {acc}, v[{SOP+4*st}:{SOP+4*st+3}], v[{M+8*ct+4*st}:{M+8*ct+4*st+3}], {acc}"
    def quarter(D,q,after_exp=None,in_exp=None,after_add=None,in_rcp=None):
        ct,st=q//2,q%2
        d0=D+16*ct+8*st
        Tq=T+8*(q%2)
        in_exp=list(in_exp or []); in_rcp=list(in_rcp or [])
        for i in range(8):
            a.I(f"v_exp_f32 v{Tq+i}, v{d0+i}")
            if in_exp:
                for x in in_exp.pop(0): a.I(x)
        for g in in_exp:
            for x in g: a.I(x)
        for x in (after_exp or []): a.I(x)
        for p in range(4):
            a.I(f"v_pk_add_f32 v[{Tq+2*p}:{Tq+2*p+1}], v[{Tq+2*p}:{Tq+2*p+1}], 1.0 op_sel_hi:[1,0]")
        for x in (after_add or []): a.I(x)
        for i in range(8):
            a.I(f"v_rcp_f32 v{Tq+i}, v{Tq+i}")
            if in_rcp:
                for x in in_rcp.pop(0): a.I(x)
        for g in in_rcp:
            for x in g: a.I(x)
        for p in range(4):
            a.I(f"v_pk_mul_f32 v[{Tq+2*p}:{Tq+2*p+1}], v[{Tq+2*p}:{Tq+2*p+1}], v[{d0+2*p}:{d0+2*p+1}]")
        for p in range(4):
            a.I(f"v_cvt_pk_bf16_f32 v{M+8*ct+4*st+p}, v{Tq+2*p}, v{Tq+2*p+1}")
    def body(Dc,Dn,Sc,Sn):
        a.I("s_waitcnt vmcnt(0)")
        for x in reads_next(): a.I(x)
        for x in adv(): a.I(x)
        L,Dm=dma(SRv)
        pm0=pre_mfma(Dn,0); pm1=pre_mfma(Dn,1)
        quarter(Dc,0, after_add=["s_waitcnt lgkmcnt(0)"]+L+sp_valu(),
                in_rcp=[Dm[0],[pm0[0]],Dm[1],[pm0[1]],Dm[2],[pm0[2]],Dm[3]])
        quarter(Dc,1, in_exp=[[],[],[seg_mfma(Sc,0)],[pm1[0]],[],[pm1[1]],[],[pm1[2]]],
                after_add=sp_lds(Sn))
        quarter(Dc,2, in_exp=[[],[],[seg_mfma(Sc,1)]])
        quarter(Dc,3, in_exp=[[],[],[seg_mfma(Sc,2)]])
        a.I("s_sub_u32 s%d, s%d, 1"%(sNT,sNT))
        a.I("s_cmp_eq_u32 s%d, 1"%sNT)
        a.I(seg_mfma(Sc,3))
    def tail(Dc,Sc):
        a.I("s_waitcnt lgkmcnt(0)")
        quarter(Dc,0)
        quarter(Dc,1, in_exp=[[],[],[seg_mfma(Sc,0)]])
        quarter(Dc,2, in_exp=[[],[],[seg_mfma(Sc,1)]])
        quarter(Dc,3, in_exp=[[],[],[seg_mfma(Sc,2)]])
        a.I("s_nop 1")
        a.I(seg_mfma(Sc,3))
    a.I(f"ds_read_b64 v[{SRv}:{SRv+1}], v{vSa}")
    a.I(f"v_add_u32 v{vSa}, 64, v{vSa}")
    a.I("s_waitcnt lgkmcnt(0)")
    L,Dm=dma(SRv)
    for x in L: a.I(x)
    for g in Dm:
        for x in g: a.I(x)
    a.I("s_waitcnt vmcnt(0)")
    for x in reads_next(): a.I(x)
    for x in adv(): a.I(x)
    a.I("s_waitcnt lgkmcnt(0)")
    L,Dm=dma(SRv)
    for x in L: a.I(x)
    for x in sp_valu(): a.I(x)
    for g in Dm:
        for x in g: a.I(x)
    for x in pre_mfma(DA,0)+pre_mfma(DA,1): a.I(x)
    for x in sp_lds(SOPA): a.I(x)
    a.I(f"""
    s_nop 7
    s_cmp_eq_u32 s{sNT}, 1
    s_cbranch_scc1 L_k2_tailA
    L_k2_loop:
    """)
    body(DA,DB,SOPA,SOPB)
    a.I("s_cbranch_scc1 L_k2_tailB")
    body(DB,DA,SOPB,SOPA)
    a.I("s_cbranch_scc0 L_k2_loop")
    a.I("L_k2_tailA:")
    tail(DA,SOPA)
    a.I("s_branch L_k2_tilesdone")
    a.I("L_k2_tailB:")
    tail(DB,SOPB)
    a.I("L_k2_tilesdone:")
    a.I(f"""
    s_add_u32 s{sBeta}, s{sBeta}, {CAPE}
    s_cmp_ge_u32 s{sBeta}, s{sT}
    s_cbranch_scc1 L_k2_epi
    s_waitcnt vmcnt(0) lgkmcnt(0)
    s_barrier
    v_lshlrev_b32 v{vt0}, 2, v1
    ds_write_b32 v{vt0}, v{vZero} offset:{CNT2_B}
    s_branch L_k2_batch
    L_k2_epi:
    """)
    a.I(f"""
    s_nop 7
    s_nop 3
    s_mov_b32 s{sC2}, {NEG_LN2}
    v_and_b32 v{vt0}, 31, v1
    v_lshrrev_b32 v{vt1}, 5, v1           ; hh
    s_mul_i32 s{sT0}, s{sWave}, 5
    v_add_u32 v{vt2}, s{sT0}, v{vt1}
    v_lshlrev_b32 v{vt3}, 7, v{vt2}
    v_lshl_add_u32 v{vt3}, v{vt0}, 1, v{vt3}
    v_add_u32 v{vt3}, {MI_B}, v{vt3}
    v_lshlrev_b32 v{vt4}, 4, v{vt2}
    """)
    for q in range(3):
        a.I(f"v_mul_f32 v{T+2*q}, s{sC2}, v{ACC+4*q}")
        a.I(f"v_mul_f32 v{T+2*q+1}, s{sC2}, v{ACC+16+4*q}")
        a.I(f"v_cvt_pk_bf16_f32 v{T+2*q}, v{T+2*q}, v{T+2*q+1}")
    for q in range(3):
        if q==2: a.I("s_mov_b32 exec_hi, 0")
        a.I(f"ds_write_b16 v{vt3}, v{T+2*q} offset:{256*q}")
        a.I(f"ds_write_b16_d16_hi v{vt3}, v{T+2*q} offset:{256*q+64}")
    a.I("s_mov_b64 exec, -1")
    Z=M
    for q in range(3):
        for d in range(1,4):
            z=Z+3*q+d-1
            a.I(f"v_mul_f32 v{z}, v{vWXk}, v{ACC+4*q+d}")
            a.I(f"v_fmac_f32 v{z}, v{vWXk+1}, v{ACC+16+4*q+d}")
    steps = ["row_shr:1 row_mask:0xf bank_mask:0xf bound_ctrl:0","row_shr:2 row_mask:0xf bank_mask:0xf bound_ctrl:0",
             "row_shr:4 row_mask:0xf bank_mask:0xf bound_ctrl:0","row_shr:8 row_mask:0xf bank_mask:0xf bound_ctrl:0",
             "row_bcast:15 row_mask:0xa bank_mask:0xf"]
    for st in steps:
        for z in range(9):
            a.I(f"v_add_f32_dpp v{Z+z}, v{Z+z}, v{Z+z} {st}")
    a.I("s_mov_b32 exec_lo, 0x80000000")
    a.I("s_mov_b32 exec_hi, 0x80000000")
    for q in range(3):
        if q==2: a.I("s_mov_b32 exec_hi, 0")
        for d in range(1,4):
            a.I(f"ds_write_b32 v{vt4}, v{Z+3*q+d-1} offset:{PD_B+32*q+4*(d-1)}")
    a.I("s_mov_b64 exec, -1")
    WO=DA
    HO=DA+16
    a.I(f"""
    v_lshrrev_b32 v{vt0}, 4, v1
    v_and_b32 v{vt1}, 15, v1             ; i = n16
    v_lshrrev_b32 v{vt2}, 2, v{vt1}
    v_lshl_add_u32 v{vt2}, v{vt0}, 3, v{vt2}
    v_lshlrev_b32 v{vt2}, 7, v{vt2}
    v_and_b32 v{vt3}, 3, v{vt1}
    v_lshl_add_u32 v{vt2}, v{vt3}, 3, v{vt2}
    s_and_b32 s{sT0}, s{sWave}, 3
    s_lshl_b32 s{sT0}, s{sT0}, 5
    s_add_u32 s{sT1}, s{sT0}, {WH_B}
    v_add_u32 v{vt2}, s{sT1}, v{vt2}
    """)
    for s in range(4):
        for hf in range(2):
            a.I(f"ds_read_b64_tr_b16 v[{WO+4*s+2*hf}:{WO+4*s+2*hf+1}], v{vt2} offset:{4096*s+512*hf}")
    a.I(f"""
    s_cmp_lt_u32 s{sWave}, 4
    s_cselect_b32 s{sT2}, 0, 32
    v_add_u32 v{vt3}, s{sT2}, v{vt1}
    v_lshlrev_b32 v{vt4}, 7, v{vt3}
    v_lshl_add_u32 v{T}, v{vt0}, 4, v{vt4}
    v_add_u32 v{T}, {H_B}, v{T}
    v_lshl_add_u32 v{T+1}, v{vt0}, 3, v{vt4}
    v_add_u32 v{T+1}, s{sT0}, v{T+1}
    s_waitcnt lgkmcnt(0)
    s_barrier
    """)
    for s in range(4):
        off = (s&1)*64 + (MI_B-H_B if s>=2 else 0)
        a.I(f"ds_read_b128 v[{HO+4*s}:{HO+4*s+3}], v{T} offset:{off}")
    for s in range(4):
        off = (s&1)*64 + (MI_B-H_B if s>=2 else 0) + 2048
        a.I(f"ds_read_b128 v[{HO+16+4*s}:{HO+16+4*s+3}], v{T} offset:{off}")
    a.I(f"v_add_u32 v{T+2}, {H_B}, v{T+1}")
    a.I(f"ds_read_b64 v[{T+4}:{T+5}], v{T+2}")
    a.I(f"ds_read_b64 v[{T+6}:{T+7}], v{T+2} offset:2048")
    a.I(f"""
    v_mul_u32_u24 v{T+8}, 171, v0
    v_lshrrev_b32 v{T+8}, 9, v{T+8}          ; node = t/3
    v_mad_i32_i24 v{T+9}, v{T+8}, -3, v0      ; d
    v_lshlrev_b32 v{T+10}, 4, v{T+8}
    v_lshl_add_u32 v{T+10}, v{T+9}, 2, v{T+10}
    v_lshlrev_b32 v{T+11}, 1, v0
    s_mul_i32 s{sT1}, s2, 240
    v_cmp_gt_u32 s[{sV}:{sV+1}], 0x78, v0
    """ .replace("0x78, v0","s%d, v0"%sOOB).replace("v_cmp_gt_u32 s[","s_movk_i32 s%d, 120\n    v_cmp_gt_u32 s["%sOOB))
    a.I(f"""
    s_mov_b64 exec, s[{sV}:{sV+1}]
    s_cbranch_execz L_k2_nopos1
    ds_read_b32 v{T+12}, v{T+10} offset:{PD_B}
    buffer_load_ushort v{T+13}, v{T+11}, s[{sPOS}:{sPOS+3}], s{sT1} offen
    L_k2_nopos1:
    s_mov_b64 exec, -1
    s_waitcnt lgkmcnt(0)
    """)
    DO=ACC
    for s in range(4):
        c="0" if s==0 else f"v[{DO}:{DO+3}]"
        a.I(f"v_mfma_f32_16x16x32_bf16 v[{DO}:{DO+3}], v[{WO+4*s}:{WO+4*s+3}], v[{HO+4*s}:{HO+4*s+3}], {c}")
        c="0" if s==0 else f"v[{DO+4}:{DO+7}]"
        a.I(f"v_mfma_f32_16x16x32_bf16 v[{DO+4}:{DO+7}], v[{WO+4*s}:{WO+4*s+3}], v[{HO+16+4*s}:{HO+16+4*s+3}], {c}")
    a.I(f"s_mov_b32 s{sC1}, {NEG_LOG2E}")
    TT=M
    for tl in range(2):
        D=DO+4*tl
        for i in range(4): a.I(f"v_mul_f32 v{TT+i}, s{sC1}, v{D+i}")
        for i in range(4): a.I(f"v_exp_f32 v{TT+i}, v{TT+i}")
        for i in range(4): a.I(f"v_add_f32 v{TT+i}, 1.0, v{TT+i}")
        for i in range(4): a.I(f"v_rcp_f32 v{TT+i}, v{TT+i}")
        hr=T+4+2*tl
        a.I(f"v_lshlrev_b32 v{TT+4}, 16, v{hr}")
        a.I(f"v_and_b32 v{TT+5}, s{sMaskHi}, v{hr}")
        a.I(f"v_lshlrev_b32 v{TT+6}, 16, v{hr+1}")
        a.I(f"v_and_b32 v{TT+7}, s{sMaskHi}, v{hr+1}")
        for i in range(4): a.I(f"v_fma_f32 v{TT+4+i}, v{D+i}, v{TT+i}, v{TT+4+i}")
        a.I(f"v_cvt_pk_bf16_f32 v{D}, v{TT+4}, v{TT+5}")
        a.I(f"v_cvt_pk_bf16_f32 v{D+1}, v{TT+6}, v{TT+7}")
    a.I(f"""
    s_mul_i32 s{sT1}, s2, {BN*128}
    s_cmp_lt_u32 s{sWave}, 4
    s_cbranch_scc0 L_k2_hiw
    buffer_store_dwordx2 v[{DO}:{DO+1}], v{T+1}, s[{sOUT}:{sOUT+3}], s{sT1} offen
    buffer_store_dwordx2 v[{DO+4}:{DO+5}], v{T+1}, s[{sOUT}:{sOUT+3}], s{sT1} offen offset:2048
    s_branch L_k2_hdone
    L_k2_hiw:
    v_cmp_gt_u32 vcc, 8, v{vt1}
    s_and_saveexec_b64 s[{sSave}:{sSave+1}], vcc
    buffer_store_dwordx2 v[{DO}:{DO+1}], v{T+1}, s[{sOUT}:{sOUT+3}], s{sT1} offen
    s_mov_b64 exec, s[{sSave}:{sSave+1}]
    L_k2_hdone:
    s_mov_b64 exec, s[{sV}:{sV+1}]
    s_cbranch_execz L_k2_end
    s_mul_i32 s{sT1}, s2, 240
    s_waitcnt vmcnt(2)
    v_lshlrev_b32 v{T+13}, 16, v{T+13}
    v_add_f32 v{T+13}, v{T+13}, v{T+12}
    v_cvt_pk_bf16_f32 v{T+13}, v{T+13}, 0
    buffer_store_short v{T+13}, v{T+11}, s[{sPOUT}:{sPOUT+3}], s{sT1} offen
    L_k2_end:
    s_endpgm
    """)

def kd(name, vgpr, sgpr):
    acc=(vgpr+3)//4*4
    return f""".section .rodata,"a"
.p2align 6
.amdhsa_kernel {name}
  .amdhsa_next_free_vgpr {vgpr}
  .amdhsa_next_free_sgpr {sgpr}
  .amdhsa_accum_offset {acc}
  .amdhsa_group_segment_fixed_size 0
  .amdhsa_kernarg_size 88
  .amdhsa_user_sgpr_count 2
  .amdhsa_user_sgpr_kernarg_segment_ptr 1
  .amdhsa_system_sgpr_workgroup_id_x 1
  .amdhsa_float_denorm_mode_32 3
.end_amdhsa_kernel
"""

K1NAME="egnn_bin_kernel"
K2NAME="gather_scatter__cheap_equivariant_egnn__graph_kernel"
HEADER=open('gather_scatter__cheap_equivariant_egnn__graph.s.ref').read().split('; Override launch')[0]

def build(out):
    a1=Asm(); gen_k1(a1); n1=a1.pad(); p1=a1.check_branches()
    a2=Asm(); gen_k2(a2); n2=a2.pad(); p2=a2.check_branches()
    for p in p1+p2: print("BRANCH HAZARD:", p)
    print("nops inserted:", n1, n2)
    s=HEADER
    s+=f"; @launch kernel={K1NAME} grid=({NCH},1,1) block=(512,1,1) lds={LDS1}\n"
    s+=f"; @launch kernel={K2NAME} grid=({NB},1,1) block=(512,1,1) lds={LDS2}\n"
    s+='.amdgcn_target "amdgcn-amd-amdhsa--gfx950"\n.text\n'
    for name,a in ((K1NAME,a1),(K2NAME,a2)):
        s+=f".globl {name}\n.p2align 8\n.type {name},@function\n{name}:\n"+a.text()
    s+=".fill 64, 4, 0xBF800000\n"
    s+=kd(K1NAME,120,96)+kd(K2NAME,220,102)
    open(out,'w').write(s)

if __name__=='__main__':
    build(sys.argv[1] if len(sys.argv)>1 else 'gather_scatter__cheap_equivariant_egnn__graph.s')
```
